```python
import torch

def _softmax(x, axis=-1):
    return torch.softmax(x, dim=axis)
def _gelu(x):
    return torch.nn.functional.gelu(x, approximate="tanh")
def _silu(x):
    return torch.nn.functional.silu(x)
def _sigmoid(x):
    return torch.sigmoid(x)
def _layernorm(x, axis=-1, eps=1e-5):
    m = x.mean(dim=axis, keepdim=True)
    v = x.var(dim=axis, keepdim=True, unbiased=False)
    return (x - m) / torch.sqrt(v + eps)
def _scatter_add(tgt, idx, src, axis=0):
    return tgt.clone().index_add_(axis, idx, src)
def _segment_sum(src, seg, n):
    out = torch.zeros((n,) + src.shape[1:], dtype=src.dtype)
    return out.index_add_(0, seg, src)
def _pad(x, pw):
    flat = tuple(v for pair in reversed(pw) for v in pair)
    return torch.nn.functional.pad(x, flat)

kernel_name = 'parallel_sum__grouped_kv_mqa__swiglu_ffn__prompt'

def setup_inputs():

    _w = (lambda a: (lambda t: t.to(torch.bfloat16) if t.is_floating_point() else t)(torch.as_tensor(a)))
    def _A_setup():
        B, S, D, H = 1, 2048, 640, 32
        Dh = D // H
        return {
            "x": _w((lambda *s: torch.randn(*s, dtype=torch.bfloat16) * 0.05)(B, S, D)),
            "wq": _w((lambda *s: torch.randn(*s, dtype=torch.bfloat16) * 0.2)(D, H * Dh)),
            "wk": _w((lambda *s: torch.randn(*s, dtype=torch.bfloat16) * 0.2)(D, Dh)),
            "wv": _w((lambda *s: torch.randn(*s, dtype=torch.bfloat16) * 0.1)(D, Dh)),
            "wo": _w((lambda *s: torch.randn(*s, dtype=torch.bfloat16) * 0.1)(H * Dh, D)),
        }
    _A_in = _A_setup()

    def _B_setup():
        B, S, D, F = 1, 2048, 640, 1536
        return {
            "x": _w((lambda *s: torch.randn(*s, dtype=torch.bfloat16) * 0.05)(B, S, D)),
            "w_gate": _w((lambda *s: torch.randn(*s, dtype=torch.bfloat16) * 0.1)(D, F)),
            "w_up": _w((lambda *s: torch.randn(*s, dtype=torch.bfloat16) * 0.1)(D, F)),
            "w_down": _w((lambda *s: torch.randn(*s, dtype=torch.bfloat16) * 0.1)(F, D)),
        }
    _B_in = _B_setup()

    return {
        "A_x": _A_in["x"],
        "A_wq": _A_in["wq"],
        "A_wk": _A_in["wk"],
        "A_wv": _A_in["wv"],
        "A_wo": _A_in["wo"],
        "B_x": _B_in["x"],
        "B_w_gate": _B_in["w_gate"],
        "B_w_up": _B_in["w_up"],
        "B_w_down": _B_in["w_down"],
    }

def reference(A_x, A_wq, A_wk, A_wv, A_wo, B_x, B_w_gate, B_w_up, B_w_down):
    def _A_ref(x, wq, wk, wv, wo):
        B, S, D = x.shape
        H = 32
        Dh = D // H
        q = (lambda x, *d: x.permute(*d))((x @ wq).reshape(B, S, H, Dh), 0, 2, 1, 3)
        k = x @ wk
        v = x @ wv
        scores = torch.einsum("bhqd,bkd->bhqk", q, k) * (Dh ** -0.5)
        p = _softmax(scores, axis=-1)
        o = torch.einsum("bhqk,bkd->bhqd", p, v)
        return (lambda x, *d: x.permute(*d))(o, 0, 2, 1, 3).reshape(B, S, H * Dh) @ wo

    def _B_ref(x, w_gate, w_up, w_down):
        g = _silu(x @ w_gate)
        u = x @ w_up
        return (g * u) @ w_down

    x = A_x
    xn = _layernorm(x, axis=-1)
    return x + _A_ref(xn, A_wq, A_wk, A_wv, A_wo) + _B_ref(xn, B_w_gate, B_w_up, B_w_down)
```

```python
class Asm:
    def __init__(self):
        self.lines = []
        self.nlab = 0
    def __call__(self, s):
        for l in s.split("\n"):
            l = l.strip()
            if l:
                if l.endswith(":") or l.startswith("."):
                    self.lines.append(l)
                else:
                    self.lines.append("    " + l)
    def label(self, base="L"):
        self.nlab += 1
        return f"{base}_{self.nlab}"
    def text(self):
        return "\n".join(self.lines) + "\n"

def vr(b, n=1):
    return f"v{b}" if n == 1 else f"v[{b}:{b+n-1}]"
def sr(b, n=1):
    return f"s{b}" if n == 1 else f"s[{b}:{b+n-1}]"

class Alloc:
    def __init__(self, start, limit):
        self.p = start
        self.limit = limit
        self.hi = start
    def __call__(self, n=1, align=None):
        if align is None:
            align = 1 if n == 1 else (2 if n < 4 else 4)
        self.p = (self.p + align - 1) // align * align
        b = self.p
        self.p += n
        assert self.p <= self.limit, f"out of registers: {self.p} > {self.limit}"
        self.hi = max(self.hi, self.p)
        return b
    def mark(self):
        return self.p
    def reset(self, m):
        self.p = m

def kernel_desc(name, nvgpr, nsgpr=102):
    acc = (nvgpr + 3) // 4 * 4
    return f""".amdhsa_kernel {name}
  .amdhsa_next_free_vgpr {nvgpr}
  .amdhsa_next_free_sgpr {nsgpr}
  .amdhsa_accum_offset {acc}
  .amdhsa_group_segment_fixed_size 0
  .amdhsa_kernarg_size 96
  .amdhsa_user_sgpr_count 2
  .amdhsa_user_sgpr_kernarg_segment_ptr 1
  .amdhsa_system_sgpr_workgroup_id_x 1
.end_amdhsa_kernel
"""
```

```python
import sys, struct
from asmlib import *

NAME = "parallel_sum__grouped_kv_mqa__swiglu_ffn__prompt"
QF = 0x000000
KF = 0x300000
VF = 0x320000
AF = 0x400000
WF = 0xD00000
WS_BYTES = 0x1000000
OOB = 0x40000000
def f2u(x): return struct.unpack("<I", struct.pack("<f", x))[0]
LOG2E = 1.4426950408889634
QSCALE = 20 ** -0.5 * LOG2E

def srd(a, d, p, nbytes):
    a(f"s_mov_b32 s{d}, s{p}")
    a(f"s_and_b32 s{d+1}, s{p+1}, 0xffff")
    a(f"s_mov_b32 s{d+2}, {nbytes}")
    a(f"s_mov_b32 s{d+3}, 0x00020000")

SLOT = 49152
LDS_S = 3 * SLOT
LDS_R = LDS_S + 1024
LDS_V = LDS_R + 4096
K1_LDS = LDS_V + 8192

def bf16_round(a, v):
    a(f"v_cvt_pk_bf16_f32 {vr(v)}, {vr(v)}, {vr(v)}")
    a(f"v_and_b32 {vr(v)}, 0xffff0000, {vr(v)}")

def ln_stats(a, vsx, vsq, vt, s_tmp):
    a(f"v_mul_f32 {vr(vsx)}, {f2u(1.0/640):#x}, {vr(vsx)}")
    a(f"v_mul_f32 {vr(vsq)}, {f2u(1.0/640):#x}, {vr(vsq)}")
    a(f"v_fma_f32 {vr(vsq)}, -{vr(vsx)}, {vr(vsx)}, {vr(vsq)}")
    a(f"v_max_f32 {vr(vsq)}, 0, {vr(vsq)}")
    bf16_round(a, vsx)
    bf16_round(a, vsq)
    a(f"v_add_f32 {vr(vsq)}, {f2u(1e-5):#x}, {vr(vsq)}")
    bf16_round(a, vsq)
    a(f"v_sqrt_f32 {vr(vsq)}, {vr(vsq)}")
    a("s_nop 0")
    bf16_round(a, vsq)

def half_sum(a, v, t):
    a(f"v_mov_b32 {vr(t)}, {vr(v)}")
    a("s_nop 1")
    a(f"v_permlane32_swap_b32 {vr(v)}, {vr(t)}")
    a("s_nop 1")
    a(f"v_add_f32 {vr(v)}, {vr(v)}, {vr(t)}")

def gen_k1(a):
    K = "k1_kernel"
    a(f".globl {K}\n.p2align 8\n.type {K},@function\n{K}:")
    a("s_cmp_ge_u32 s2, 256\ns_cbranch_scc1 k1_end")
    a("s_load_dwordx8 s[40:47], s[0:1], 0")
    a("s_load_dwordx4 s[48:51], s[0:1], 48")
    a("s_load_dwordx2 s[52:53], s[0:1], 88")
    sW, sRB, sCB, sROLE = 20, 21, 22, 23
    sXo, sWo, sWo2, sWo3, sM0, sCnt, sDelta, sT0, sT1, sStr3, sOnes, sI, sJ, sSlotR = 24, 25, 26, 27, 28, 29, 30, 31, 32, 33, 34, 35, 36, 37
    V = Alloc(1, 256)
    vL = V(); vT0 = V(); vT1 = V(); vT2 = V(); vT3 = V()
    a(f"v_and_b32 {vr(vL)}, 63, v0")
    a(f"v_lshrrev_b32 {vr(vT0)}, 6, v0")
    a("s_nop 0")
    a(f"v_readfirstlane_b32 s{sW}, {vr(vT0)}")
    a(f"s_and_b32 s{sT0}, s2, 7")
    a(f"s_lshr_b32 s{sT1}, s2, 3")
    a(f"s_and_b32 s{sRB}, s{sT0}, 1")
    a(f"s_lshl_b32 s{sRB}, s{sRB}, 3")
    a(f"s_and_b32 s{sCB}, s{sT1}, 7")
    a(f"s_add_u32 s{sRB}, s{sRB}, s{sCB}")
    a(f"s_lshr_b32 s{sROLE}, s{sT1}, 3")
    a(f"s_lshr_b32 s{sCB}, s{sT0}, 1")
    a(f"s_mov_b32 s{sOnes}, 0x3f803f80")
    a(f"v_lshlrev_b32 {vr(vT0)}, 2, v0")
    a(f"v_and_b32 {vr(vT0)}, 1023, {vr(vT0)}")
    a(f"v_add_u32 {vr(vT0)}, {LDS_S}, {vr(vT0)}")
    a(f"v_mov_b32 {vr(vT1)}, 0")
    a(f"ds_write_b32 {vr(vT0)}, {vr(vT1)}")
    vx0 = V(); vx1 = V()
    a(f"v_lshrrev_b32 {vr(vT0)}, 3, {vr(vL)}")
    a(f"s_lshl_b32 s{sT0}, s{sW}, 4")
    a(f"s_lshl_b32 s{sT1}, s{sRB}, 7")
    a(f"s_add_u32 s{sT0}, s{sT0}, s{sT1}")
    a(f"v_add_u32 {vr(vT1)}, s{sT0}, {vr(vT0)}")
    a(f"v_mul_u32_u24 {vr(vT1)}, 1280, {vr(vT1)}")
    a(f"v_lshrrev_b32 {vr(vT0)}, 4, {vr(vL)}")
    a(f"v_and_b32 {vr(vT2)}, 7, {vr(vL)}")
    a(f"v_xor_b32 {vr(vT2)}, {vr(vT2)}, {vr(vT0)}")
    a(f"v_lshl_add_u32 {vr(vx0)}, {vr(vT2)}, 4, {vr(vT1)}")
    a(f"v_xor_b32 {vr(vx1)}, 64, {vr(vx0)}")
    a(f"v_add_u32 {vr(vx1)}, {8*1280-1024}, {vr(vx1)}")
    a("s_waitcnt lgkmcnt(0)")
    srd(a, 4, 40, 2048 * 1280)
    srd(a, 16, 52, WS_BYTES)
    a(f"s_cmp_eq_u32 s{sROLE}, 3")
    a("s_cbranch_scc1 k1_qtype")
    mark = V.mark()
    common = dict(sW=sW, sRB=sRB, sCB=sCB, sROLE=sROLE, sXo=sXo, sWo=sWo, sWo2=sWo2, sWo3=sWo3, sM0=sM0, sCnt=sCnt, sDelta=sDelta,
                  sT0=sT0, sT1=sT1, sStr3=sStr3, sOnes=sOnes, sI=sI, sJ=sJ, sSlotR=sSlotR, vL=vL, vT=[vT0, vT1, vT2, vT3], vx0=vx0, vx1=vx1)
    gen_k1_type(a, V, "F", common)
    a("s_endpgm")
    a("k1_qtype:")
    V.reset(mark)
    gen_k1_type(a, V, "Q", common)
    a("k1_end:")
    a("s_endpgm")
    return V.hi

def gen_k1_type(a, V, typ, c):
    g = globals()
    sW, sRB, sCB, sROLE, sXo, sWo, sWo2, sWo3, sM0, sCnt, sDelta, sT0, sT1, sStr3, sOnes, sI, sJ, sSlotR = [c[k] for k in
        "sW sRB sCB sROLE sXo sWo sWo2 sWo3 sM0 sCnt sDelta sT0 sT1 sStr3 sOnes sI sJ sSlotR".split()]
    vL, vx0, vx1 = c["vL"], c["vx0"], c["vx1"]
    vT0, vT1, vT2, vT3 = c["vT"]
    F = typ == "F"
    RT, CT, NDMA = (2, 2, 6) if F else (1, 3, 5)
    WP = 256 if F else 128
    va = V(); vb = V()
    vxa = [V() for _ in range(4)]
    vw = [V() for _ in range(CT)]
    sx = [V() for _ in range(RT)]; sq = [V() for _ in range(RT)]; cs = [V() for _ in range(CT)]
    X = [[V(4) for _ in range(RT)] for _ in range(2)]
    W = [[V(4) for _ in range(CT)] for _ in range(2)]
    acc = [[V(16) for _ in range(CT)] for _ in range(RT)]
    if F:
        a(f"s_mul_i32 s{sCB}, s{sCB}, 3")
        a(f"s_add_u32 s{sCB}, s{sCB}, s{sROLE}")
        srd(a, 8, 48, 640 * 3072)
        srd(a, 12, 50, 640 * 3072)
        a(f"s_and_b32 s{sI}, s{sW}, 1")
        a(f"s_lshr_b32 s{sJ}, s{sW}, 1")
        a(f"v_lshrrev_b32 {vr(vT0)}, 4, {vr(vL)}")
        a(f"s_lshl_b32 s{sT0}, s{sW}, 3")
        a(f"v_add_u32 {vr(vT1)}, s{sT0}, {vr(vT0)}")
        a(f"v_mul_u32_u24 {vr(vT1)}, 3072, {vr(vT1)}")
        a(f"v_lshlrev_b32 {vr(vT0)}, 2, {vr(vT0)}")
        a(f"v_and_b32 {vr(vT2)}, 15, {vr(vL)}")
        a(f"v_xor_b32 {vr(vT2)}, {vr(vT2)}, {vr(vT0)}")
        a(f"v_lshl_add_u32 {vr(va)}, {vr(vT2)}, 4, {vr(vT1)}")
        a(f"s_lshl_b32 s{sT0}, s{sCB}, 8")
        a(f"v_add_u32 {vr(va)}, s{sT0}, {vr(va)}")
        a(f"v_xor_b32 {vr(vb)}, 32, {vr(va)}")
    else:
        srd(a, 8, 42, 640 * 1280)
        a(f"s_and_b32 s{sI}, s{sW}, 3")
        a(f"s_lshr_b32 s{sJ}, s{sW}, 2")
        a(f"s_cmp_eq_u32 s{sCB}, 1")
        a("s_cselect_b32 s54, s44, s46")
        a("s_cselect_b32 s55, s45, s47")
        a(f"s_bitcmp1_b32 s{sCB}, 0")
        a("s_cselect_b32 s12, s54, s42")
        a("s_cselect_b32 s13, s55, s43")
        a(f"s_cselect_b32 s14, {640*40}, s10")
        a(f"s_cselect_b32 s{sStr3}, {64*40}, {64*1280}") if False else None
        a(f"s_mov_b32 s{sT0}, {64*1280}")
        a(f"s_cselect_b32 s{sStr3}, {64*40}, s{sT0}")
        a("s_cselect_b64 s[56:57], -1, 0")
        a("s_and_b32 s13, s13, 0xffff")
        a("s_mov_b32 s15, 0x00020000")
        a(f"s_lshr_b32 s{sT0}, s{sCB}, 1")
        a(f"s_mul_i32 s{sT0}, s{sT0}, 640")
        a(f"s_and_b32 s{sT1}, s{sCB}, 1")
        a(f"s_mul_i32 s{sT1}, s{sT1}, 384")
        a(f"s_add_u32 s58, s{sT0}, s{sT1}")
        a(f"v_lshrrev_b32 {vr(vT0)}, 3, {vr(vL)}")
        a(f"s_lshl_b32 s{sT0}, s{sW}, 3")
        a(f"v_add_u32 {vr(vT0)}, s{sT0}, {vr(vT0)}")
        a(f"v_lshrrev_b32 {vr(vT1)}, 2, {vr(vL)}")
        a(f"v_and_b32 {vr(vT1)}, 4, {vr(vT1)}")
        a(f"v_and_b32 {vr(vT2)}, 7, {vr(vL)}")
        a(f"v_xor_b32 {vr(vT2)}, {vr(vT2)}, {vr(vT1)}")
        a(f"v_mul_u32_u24 {vr(vT1)}, 1280, {vr(vT0)}")
        a(f"v_lshl_add_u32 {vr(va)}, {vr(vT2)}, 4, {vr(vT1)}")
        a(f"v_add_u32 {vr(va)}, s58, {vr(va)}")
        a(f"v_add_u32 {vr(vb)}, 256, {vr(va)}")
        a(f"v_mul_u32_u24 {vr(vT1)}, 40, {vr(vT0)}")
        a(f"v_lshl_add_u32 {vr(vT1)}, {vr(vT2)}, 4, {vr(vT1)}")
        a(f"v_mov_b32 {vr(vT3)}, {OOB}")
        a(f"v_cmp_gt_u32 vcc, 3, {vr(vT2)}")
        a("s_nop 1")
        a(f"v_cndmask_b32 {vr(vT1)}, {vr(vT3)}, {vr(vT1)}, vcc")
        a(f"v_cndmask_b32 {vr(vb)}, {vr(vb)}, {vr(vT1)}, s[56:57]")

    def issue_dma():
        r = []
        r.append(f"s_lshl_b32 s{sT0}, s{sW}, 11\ns_add_u32 m0, s{sM0}, s{sT0}")
        r.append(f"s_nop 0\nbuffer_load_dwordx4 {vr(vx0)}, s[4:7], s{sXo} offen lds")
        r.append(f"buffer_load_dwordx4 {vr(vx1)}, s[4:7], s{sXo} offen offset:1024 lds")
        if F:
            r.append(f"s_add_u32 m0, m0, 16384\ns_add_u32 s{sWo2}, s{sWo}, {4*3072-1024}\nbuffer_load_dwordx4 {vr(va)}, s[8:11], s{sWo} offen lds")
            r.append(f"buffer_load_dwordx4 {vr(va)}, s[8:11], s{sWo2} offen offset:1024 lds")
            r.append(f"s_add_u32 m0, m0, 16384\ns_nop 0\nbuffer_load_dwordx4 {vr(vb)}, s[12:15], s{sWo} offen lds")
            r.append(f"buffer_load_dwordx4 {vr(vb)}, s[12:15], s{sWo2} offen offset:1024 lds")
            r.append(f"s_add_u32 s{sWo}, s{sWo}, {64*3072}")
        else:
            r.append(f"s_lshl_b32 s{sT0}, s{sW}, 10\ns_add_u32 s{sT0}, s{sT0}, 16384\ns_add_u32 m0, s{sM0}, s{sT0}\ns_add_u32 s{sWo2}, s{sWo}, 128\nbuffer_load_dwordx4 {vr(va)}, s[8:11], s{sWo} offen lds")
            r.append(f"s_add_u32 m0, m0, 8192\ns_nop 0\nbuffer_load_dwordx4 {vr(va)}, s[8:11], s{sWo2} offen lds")
            r.append(f"s_add_u32 m0, m0, 8192\ns_nop 0\nbuffer_load_dwordx4 {vr(vb)}, s[12:15], s{sWo3} offen lds")
            r.append(f"s_add_u32 s{sWo}, s{sWo}, {64*1280}\ns_add_u32 s{sWo3}, s{sWo3}, s{sStr3}")
        r.append(f"s_add_u32 s{sXo}, s{sXo}, 128\ns_cmp_ge_u32 s{sXo}, 1280\ns_cselect_b32 s{sXo}, {OOB}, s{sXo}")
        r.append(f"s_add_u32 s{sM0}, s{sM0}, {SLOT}\ns_cmp_ge_u32 s{sM0}, {3*SLOT}\ns_cselect_b32 s{sM0}, 0, s{sM0}")
        return r

    a(f"s_mov_b32 s{sXo}, 0\ns_mov_b32 s{sWo}, 0\ns_mov_b32 s{sWo3}, 0\ns_mov_b32 s{sM0}, 0")
    for st in range(3):
        for x in issue_dma(): a(x)
    a(f"v_and_b32 {vr(vT0)}, 31, {vr(vL)}")
    a(f"v_lshrrev_b32 {vr(vT1)}, 5, {vr(vL)}")
    a(f"v_bfe_u32 {vr(vT2)}, {vr(vL)}, 1, 3")
    a(f"v_xor_b32 {vr(vT2)}, {vr(vT2)}, {vr(vT1)}")
    a(f"v_lshlrev_b32 {vr(vT2)}, 4, {vr(vT2)}")
    a(f"v_lshl_add_u32 {vr(vxa[0])}, {vr(vT0)}, 7, {vr(vT2)}")
    a(f"s_lshl_b32 s{sT0}, s{sI}, {13 if F else 12}")
    a(f"v_add_u32 {vr(vxa[0])}, s{sT0}, {vr(vxa[0])}")
    for ks in range(1, 4):
        a(f"v_xor_b32 {vr(vxa[ks])}, {32*ks}, {vr(vxa[0])}")
    a(f"v_bfe_u32 {vr(vT0)}, {vr(vL)}, 2, 2")
    a(f"v_lshl_add_u32 {vr(vT2)}, {vr(vT1)}, 3, {vr(vT0)}")
    a(f"v_bfe_u32 {vr(vT3)}, {vr(vL)}, 4, 1")
    if F:
        a(f"v_lshlrev_b32 {vr(vw[0])}, 8, {vr(vT2)}")
        a(f"v_lshl_add_u32 {vr(vw[0])}, {vr(vT3)}, 14, {vr(vw[0])}")
        a(f"v_lshlrev_b32 {vr(vT0)}, 6, {vr(vT0)}")
        a(f"v_lshl_or_b32 {vr(vT0)}, {vr(vT3)}, 5, {vr(vT0)}")
        a(f"s_lshl_b32 s{sT0}, s{sJ}, 6")
        a(f"v_xor_b32 {vr(vT0)}, s{sT0}, {vr(vT0)}")
        a(f"v_and_b32 {vr(vT2)}, 3, {vr(vL)}")
        a(f"v_lshl_add_u32 {vr(vT0)}, {vr(vT2)}, 3, {vr(vT0)}")
        a(f"v_add_u32 {vr(vw[0])}, {vr(vw[0])}, {vr(vT0)}")
        a(f"v_add_u32 {vr(vw[0])}, 16384, {vr(vw[0])}")
        a(f"v_xor_b32 {vr(vw[1])}, 32, {vr(vw[0])}")
    else:
        a(f"v_lshlrev_b32 {vr(vT2)}, 7, {vr(vT2)}")
        a(f"v_lshl_add_u32 {vr(vT2)}, {vr(vT3)}, 5, {vr(vT2)}")
        a(f"v_bfe_u32 {vr(vT0)}, {vr(vL)}, 3, 1")
        a(f"v_lshl_add_u32 {vr(vT2)}, {vr(vT0)}, 6, {vr(vT2)}")
        a(f"v_and_b32 {vr(vT0)}, 3, {vr(vL)}")
        a(f"v_lshl_add_u32 {vr(vT2)}, {vr(vT0)}, 3, {vr(vT2)}")
        for cc in range(3):
            a(f"s_mul_i32 s{sT0}, s{sJ}, 3")
            a(f"s_add_u32 s{sT0}, s{sT0}, {cc}")
            a(f"s_and_b32 s{sT1}, s{sT0}, 1")
            a(f"s_lshl_b32 s{sT1}, s{sT1}, 6")
            a(f"v_xor_b32 {vr(vw[cc])}, s{sT1}, {vr(vT2)}")
            a(f"s_lshr_b32 s{sT0}, s{sT0}, 1")
            a(f"s_lshl_b32 s{sT0}, s{sT0}, 13")
            a(f"s_add_u32 s{sT0}, s{sT0}, 16384")
            a(f"v_add_u32 {vr(vw[cc])}, s{sT0}, {vr(vw[cc])}")
    for r in sx + sq + cs: a(f"v_mov_b32 {vr(r)}, 0")
    for rt in range(RT):
        for ct in range(CT):
            for i in range(16): a(f"v_mov_b32 {vr(acc[rt][ct]+i)}, 0")

    def reads(ks, st):
        r = []
        for rt in range(RT):
            r.append(f"ds_read_b128 {vr(X[st][rt],4)}, {vr(vxa[ks])} offset:{4096*rt}")
        for ct in range(CT):
            for h in range(2):
                r.append(f"ds_read_b64_tr_b16 {vr(W[st][ct]+2*h,2)}, {vr(vw[ct])} offset:{(16*ks+4*h)*WP}")
        return r
    def mfmas(st):
        return [f"v_mfma_f32_32x32x16_bf16 {vr(acc[rt][ct],16)}, {vr(W[st][ct],4)}, {vr(X[st][rt],4)}, {vr(acc[rt][ct],16)}"
                for ct in range(CT) for rt in range(RT)]
    def stats(ks, st):
        l1 = a.label("k1_sk"); l2 = a.label("k1_sk")
        if F: a(f"s_cmp_eq_u32 s{sJ}, {ks}")
        else: a(f"s_cmp_eq_u32 s{sJ}, {ks&1}")
        a(f"s_cbranch_scc0 {l1}")
        for i in range(4):
            for rt in range(RT):
                a(f"v_dot2_f32_bf16 {vr(sx[rt])}, {vr(X[st][rt]+i)}, s{sOnes}, {vr(sx[rt])}")
                a(f"v_dot2_f32_bf16 {vr(sq[rt])}, {vr(X[st][rt]+i)}, {vr(X[st][rt]+i)}, {vr(sq[rt])}")
        a(f"{l1}:")
        a(f"s_bitcmp{ks&1}_b32 s{sI}, 0")
        a(f"s_cbranch_scc0 {l2}")
        for i in range(4):
            for ct in range(CT):
                a(f"v_dot2_f32_bf16 {vr(cs[ct])}, {vr(W[st][ct]+i)}, s{sOnes}, {vr(cs[ct])}")
        a(f"{l2}:")
    def interleave(ms, others):
        n = len(ms)
        per = [[] for _ in range(n)]
        for i, o in enumerate(others):
            per[i * n // len(others)].append(o)
        for m, p in zip(ms, per):
            a(m)
            for o in p: a(o)

    NR = RT + 2 * CT
    a(f"s_waitcnt vmcnt({2*NDMA}) lgkmcnt(0)")
    a("s_barrier")
    for x in reads(0, 0): a(x)
    a(f"s_mov_b32 s{sCnt}, 0")
    a(f"s_mov_b32 s{sSlotR}, 0")
    loop = f"k1_loop_{typ}"
    a(".p2align 6")
    a(f"{loop}:")
    for ks in range(3):
        for x in reads(ks + 1, (ks + 1) & 1): a(x)
        a(f"s_waitcnt lgkmcnt({NR})")
        for x in mfmas(ks & 1): a(x)
        stats(ks, ks & 1)
    a(f"s_add_u32 s{sSlotR}, s{sSlotR}, 1")
    a(f"s_cmp_eq_u32 s{sSlotR}, 3")
    a(f"s_mov_b32 s{sT0}, {SLOT}")
    a(f"s_cselect_b32 s{sDelta}, {(-2*SLOT) & 0xffffffff:#x}, s{sT0}")
    a(f"s_cselect_b32 s{sSlotR}, 0, s{sSlotR}")
    for r in vxa + vw: a(f"v_add_u32 {vr(r)}, s{sDelta}, {vr(r)}")
    a(f"s_waitcnt vmcnt({NDMA}) lgkmcnt(0)")
    a("s_barrier")
    interleave(mfmas(1), reads(0, 0) + issue_dma())
    stats(3, 1)
    a(f"s_add_u32 s{sCnt}, s{sCnt}, 1")
    a(f"s_cmp_lt_u32 s{sCnt}, 10")
    a(f"s_cbranch_scc1 {loop}")
    a("s_nop 3")
    vA = X[0][0];
    a("s_waitcnt lgkmcnt(0)")
    for r in sx + sq + cs: half_sum(a, r, vT0)
    a(f"v_cmp_gt_u32 vcc, 32, {vr(vL)}")
    p = V(2)
    a("s_nop 1")
    if F:
        a(f"v_cndmask_b32 {vr(p)}, {vr(sx[1])}, {vr(sx[0])}, vcc")
        a(f"v_cndmask_b32 {vr(p+1)}, {vr(sq[1])}, {vr(sq[0])}, vcc")
        a(f"v_cndmask_b32 {vr(vT2)}, {vr(cs[1])}, {vr(cs[0])}, vcc")
        a(f"s_lshl_b32 s{sT0}, s{sI}, 11")
        a(f"s_add_u32 s{sT0}, s{sT0}, {LDS_R}")
        a(f"v_lshl_add_u32 {vr(vT1)}, {vr(vL)}, 5, s{sT0}")
        a(f"s_lshl_b32 s{sT1}, s{sJ}, 3")
        a(f"v_add_u32 {vr(vT0)}, s{sT1}, {vr(vT1)}")
        a(f"ds_write_b64 {vr(vT0)}, {vr(p,2)}")
        a(f"s_lshl_b32 s{sT0}, s{sJ}, 8")
        a(f"s_add_u32 s{sT0}, s{sT0}, {LDS_S}")
        a(f"v_lshl_add_u32 {vr(vT0)}, {vr(vL)}, 2, s{sT0}")
        a(f"ds_add_f32 {vr(vT0)}, {vr(vT2)}")
    else:
        a(f"v_mov_b32 {vr(p)}, {vr(sx[0])}")
        a(f"v_mov_b32 {vr(p+1)}, {vr(sq[0])}")
        a(f"v_and_b32 {vr(vT3)}, 31, {vr(vL)}")
        a(f"s_lshl_b32 s{sT0}, s{sI}, 10")
        a(f"s_add_u32 s{sT0}, s{sT0}, {LDS_R}")
        a(f"v_lshl_add_u32 {vr(vT1)}, {vr(vT3)}, 5, s{sT0}")
        a(f"s_lshl_b32 s{sT1}, s{sJ}, 3")
        a(f"v_add_u32 {vr(vT0)}, s{sT1}, {vr(vT1)}")
        a(f"ds_write_b64 {vr(vT0)}, {vr(p,2)}")
        a(f"s_mul_i32 s{sT0}, s{sJ}, 384")
        a(f"s_add_u32 s{sT0}, s{sT0}, {LDS_S}")
        a(f"v_lshl_add_u32 {vr(vT0)}, {vr(vT3)}, 2, s{sT0}")
        lab = a.label("k1_nocs")
        a(f"s_cmp_ge_u32 s{sI}, 2")
        a(f"s_cbranch_scc1 {lab}")
        a("s_mov_b64 exec, 0xffffffff")
        for ct in range(3):
            a(f"ds_add_f32 {vr(vT0)}, {vr(cs[ct])} offset:{128*ct}")
        a("s_mov_b64 exec, -1")
        a(f"{lab}:")
    a("s_waitcnt lgkmcnt(0)")
    a("s_barrier")
    R0 = X[0][0]; R1 = W[0][0]
    S = [V(16) for _ in range(CT)]
    a(f"ds_read_b128 {vr(R0,4)}, {vr(vT1)}")
    if F: a(f"ds_read_b128 {vr(R1,4)}, {vr(vT1)} offset:16")
    a(f"v_lshrrev_b32 {vr(vT0)}, 5, {vr(vL)}")
    a(f"v_lshl_add_u32 {vr(vT0)}, {vr(vT0)}, 4, s{sT0}")
    for ct in range(CT):
        for q in range(4):
            a(f"ds_read_b128 {vr(S[ct]+4*q,4)}, {vr(vT0)} offset:{128*ct+32*q}")
    a(f"s_waitcnt lgkmcnt({4*CT})")
    vm = sx[0]; vd = sq[0]
    a(f"v_add_f32 {vr(vm)}, {vr(R0)}, {vr(R0+2)}")
    a(f"v_add_f32 {vr(vd)}, {vr(R0+1)}, {vr(R0+3)}")
    if F:
        a(f"v_add_f32 {vr(vT2)}, {vr(R1)}, {vr(R1+2)}")
        a(f"v_add_f32 {vr(vT3)}, {vr(R1+1)}, {vr(R1+3)}")
        a(f"v_add_f32 {vr(vm)}, {vr(vm)}, {vr(vT2)}")
        a(f"v_add_f32 {vr(vd)}, {vr(vd)}, {vr(vT3)}")
    ln_stats(a, vm, vd, vT2, sT0)
    vlane16 = V()
    a(f"v_lshlrev_b32 {vr(vlane16)}, 4, {vr(vL)}")
    if F:
        a(f"v_mov_b32 {vr(sx[1])}, {vr(vm)}")
        a(f"v_mov_b32 {vr(sq[1])}, {vr(vd)}")
        a("s_nop 1")
        a(f"v_permlane32_swap_b32 {vr(sx[0])}, {vr(sx[1])}")
        a(f"v_permlane32_swap_b32 {vr(sq[0])}, {vr(sq[1])}")
        a("s_nop 1")
        ne = [V(), V()]; d2 = [V(), V()]
        for rt in range(2):
            a(f"v_rcp_f32 {vr(ne[rt])}, {vr(sq[rt])}")
            a(f"v_mul_f32 {vr(d2[rt])}, {vr(sq[rt])}, {vr(sq[rt])}")
            a(f"v_mul_f32 {vr(ne[rt])}, {f2u(-LOG2E):#x}, {vr(ne[rt])}")
        a("s_waitcnt lgkmcnt(0)")
        E = V(8)
        O = [V(4), V(4)]
        a(f"s_lshl_b32 s{sT0}, s{sRB}, 1")
        a(f"s_add_u32 s{sT0}, s{sT0}, s{sI}")
        a(f"s_mul_i32 s{sT0}, s{sT0}, 272")
        a(f"s_lshl_b32 s{sT1}, s{sCB}, 2")
        a(f"s_add_u32 s{sT1}, s{sT1}, s{sJ}")
        a(f"s_lshl_b32 s{sT1}, s{sT1}, 1")
        a(f"s_add_u32 s{sT0}, s{sT0}, s{sT1}")
        a(f"s_lshl_b32 s{sT0}, s{sT0}, 10")
        a(f"s_add_u32 s{sT0}, s{sT0}, {AF}")
        a(f"s_add_u32 s{sT1}, s{sT0}, {136*1024}")
        n = 0
        for rt in range(2):
            for ct in range(2):
                A = acc[rt][ct]
                for i in range(16):
                    a(f"v_fma_f32 {vr(A+i)}, -{vr(sx[rt])}, {vr(S[ct]+i)}, {vr(A+i)}")
                for i in range(8): a(f"v_mul_f32 {vr(E+i)}, {vr(ne[rt])}, {vr(A+i)}")
                for i in range(8): a(f"v_exp_f32 {vr(E+i)}, {vr(E+i)}")
                for i in range(8): a(f"v_mul_f32 {vr(A+i)}, {vr(A+i)}, {vr(A+8+i)}")
                for i in range(8): a(f"v_fma_f32 {vr(E+i)}, {vr(E+i)}, {vr(d2[rt])}, {vr(d2[rt])}")
                for i in range(8): a(f"v_rcp_f32 {vr(E+i)}, {vr(E+i)}")
                a("s_nop 0")
                for i in range(8): a(f"v_mul_f32 {vr(A+i)}, {vr(A+i)}, {vr(E+i)}")
                o = O[n & 1]; n += 1
                for i in range(4): a(f"v_cvt_pk_bf16_f32 {vr(o+i)}, {vr(A+2*i)}, {vr(A+2*i+1)}")
                a(f"buffer_store_dwordx4 {vr(o,4)}, {vr(vlane16)}, s[16:19], s{sT0 if rt == 0 else sT1} offen offset:{1024*ct}")
    else:
        rq = V(); rk = V()
        a(f"v_rcp_f32 {vr(rk)}, {vr(vd)}")
        a("s_nop 0")
        a(f"v_mul_f32 {vr(rq)}, {f2u(QSCALE):#x}, {vr(rk)}")
        vlane8 = V()
        a(f"v_lshlrev_b32 {vr(vlane8)}, 3, {vr(vL)}")
        a("s_waitcnt lgkmcnt(0)")
        sRT = sCnt
        a(f"s_lshl_b32 s{sRT}, s{sRB}, 2")
        a(f"s_add_u32 s{sRT}, s{sRT}, s{sI}")
        a(f"s_mul_i32 s{sT0}, s{sRT}, 40960")
        a(f"s_lshl_b32 s{sT1}, s58, 5")
        a(f"s_add_u32 s{sT0}, s{sT0}, s{sT1}")
        a(f"s_mul_i32 s{sT1}, s{sJ}, {3*2048}")
        a(f"s_add_u32 s{sT0}, s{sT0}, s{sT1}")
        if QF: a(f"s_add_u32 s{sT0}, s{sT0}, {QF}")
        a(f"s_and_b32 s{sT1}, s{sCB}, s{sJ}")
        a(f"s_and_b32 s{sDelta}, s{sT1}, 1")
        def corr(ct, r):
            A = acc[0][ct]
            for i in range(16): a(f"v_fma_f32 {vr(A+i)}, -{vr(vm)}, {vr(S[ct]+i)}, {vr(A+i)}")
            for i in range(16): a(f"v_mul_f32 {vr(A+i)}, {vr(r)}, {vr(A+i)}")
            for i in range(8): a(f"v_cvt_pk_bf16_f32 {vr(A+i)}, {vr(A+2*i)}, {vr(A+2*i+1)}")
        def qstore(ct):
            A = acc[0][ct]
            for q in range(4):
                a(f"buffer_store_dwordx2 {vr(A+2*q,2)}, {vr(vlane8)}, s[16:19], s{sT0} offen offset:{512*q}")
            a(f"s_add_u32 s{sT0}, s{sT0}, 2048")
        corr(0, rq); qstore(0)
        a(f"s_cmp_lg_u32 s{sDelta}, 0")
        a("s_cbranch_scc1 k1_kv")
        for ct in (1, 2):
            corr(ct, rq); qstore(ct)
        a("s_endpgm")
        a("k1_kv:")
        corr(1, rk)
        A = acc[0][1]
        a(f"v_cmp_gt_u32 vcc, 32, {vr(vL)}")
        a(f"s_cmp_eq_u32 s{sCB}, 3")
        a("s_cbranch_scc1 k1_v")
        a(f"v_mov_b32 {vr(vT0)}, 0x3f803f80")
        a(f"v_mov_b32 {vr(vT1)}, 0x00003f80")
        a(f"v_cndmask_b32 {vr(A+4)}, {vr(vT0)}, {vr(A+4)}, vcc")
        a(f"v_cndmask_b32 {vr(A+5)}, {vr(vT1)}, {vr(A+5)}, vcc")
        a(f"s_mul_i32 s{sT0}, s{sRT}, 1536")
        a(f"s_add_u32 s{sT0}, s{sT0}, {KF}")
        a(f"buffer_store_dwordx4 {vr(A,4)}, {vr(vlane16)}, s[16:19], s{sT0} offen")
        a(f"buffer_store_dwordx2 {vr(A+4,2)}, {vr(vlane8)}, s[16:19], s{sT0} offen offset:1024")
        a("s_endpgm")
        a("k1_v:")
        a(f"v_mov_b32 {vr(vT0)}, 0x00003f80")
        a(f"v_mov_b32 {vr(vT1)}, 0")
        a(f"v_cndmask_b32 {vr(A+4)}, {vr(vT0)}, {vr(A+4)}, vcc")
        a(f"v_cndmask_b32 {vr(A+5)}, {vr(vT1)}, {vr(A+5)}, vcc")
        a(f"v_mov_b32 {vr(A+6)}, 0")
        a(f"v_mov_b32 {vr(A+7)}, 0")
        a(f"s_lshl_b32 s{sT0}, s{sI}, 11")
        a(f"s_add_u32 s{sT0}, s{sT0}, {LDS_V}")
        a(f"v_and_b32 {vr(vT0)}, 31, {vr(vL)}")
        a(f"v_lshlrev_b32 {vr(vT0)}, 6, {vr(vT0)}")
        a(f"v_lshrrev_b32 {vr(vT1)}, 5, {vr(vL)}")
        a(f"v_lshl_add_u32 {vr(vT0)}, {vr(vT1)}, 3, {vr(vT0)}")
        a(f"v_add_u32 {vr(vT0)}, s{sT0}, {vr(vT0)}")
        for q in range(4):
            a(f"ds_write_b64 {vr(vT0)}, {vr(A+2*q,2)} offset:{16*q}")
        a(f"v_bfe_u32 {vr(vT0)}, {vr(vL)}, 2, 2")
        a(f"v_lshl_add_u32 {vr(vT0)}, {vr(vT1)}, 3, {vr(vT0)}")
        a(f"v_lshlrev_b32 {vr(vT0)}, 6, {vr(vT0)}")
        a(f"v_bfe_u32 {vr(vT1)}, {vr(vL)}, 4, 1")
        a(f"v_lshl_add_u32 {vr(vT0)}, {vr(vT1)}, 5, {vr(vT0)}")
        a(f"v_and_b32 {vr(vT1)}, 3, {vr(vL)}")
        a(f"v_lshl_add_u32 {vr(vT0)}, {vr(vT1)}, 3, {vr(vT0)}")
        a(f"v_add_u32 {vr(vT0)}, s{sT0}, {vr(vT0)}")
        a("s_waitcnt lgkmcnt(0)")
        B = acc[0][2]
        for f in range(2):
            for h in range(2):
                a(f"ds_read_b64_tr_b16 {vr(B+4*f+2*h,2)}, {vr(vT0)} offset:{(16*f+4*h)*64}")
        a(f"s_lshl_b32 s{sT0}, s{sRT}, 11")
        a(f"s_add_u32 s{sT0}, s{sT0}, {VF}")
        a("s_waitcnt lgkmcnt(0)")
        a(f"buffer_store_dwordx4 {vr(B,4)}, {vr(vlane16)}, s[16:19], s{sT0} offen")
        a(f"buffer_store_dwordx4 {vr(B+4,4)}, {vr(vlane16)}, s[16:19], s{sT0} offen offset:1024")

A_LDS_M = 0
A_LDS_FLAG = 2048
A_LDS_RP = 4096
A_LDS_O = 16384
K2_LDS = A_LDS_O + 72 * 1024

def gen_k2(a):
    K = "k2_kernel"
    a(f".globl {K}\n.p2align 8\n.type {K},@function\n{K}:")
    a("s_cmp_ge_u32 s2, 256\ns_cbranch_scc1 k2_end")
    a("s_load_dwordx2 s[40:41], s[0:1], 32")
    a("s_load_dwordx2 s[42:43], s[0:1], 64")
    a("s_load_dwordx2 s[44:45], s[0:1], 88")
    sW, sQG, sKQ, sRT, sHG, sT0, sT1, sT2, sT3, sKo, sVo, sCnt, sPre, sOff, sTry, sU, sWFo = range(20, 37)
    V = Alloc(1, 256)
    vL = V(); vT0 = V(); vT1 = V(); vT2 = V(); vT3 = V(); vl16 = V(); vl8 = V(); vidx = V(); vmx = V()
    Q1 = [V(4) for _ in range(4)]; Q2 = [V(2) for _ in range(4)]
    K1 = [V(4) for _ in range(2)]; K2 = [V(2) for _ in range(2)]
    VV = [[V(4), V(4)] for _ in range(2)]
    S = [V(16) for _ in range(4)]
    O = [V(16) for _ in range(4)]
    PK1 = [V(4) for _ in range(4)]; PK2 = [V(2) for _ in range(4)]
    a(f"v_and_b32 {vr(vL)}, 63, v0")
    a(f"v_lshrrev_b32 {vr(vT0)}, 6, v0")
    a(f"v_lshlrev_b32 {vr(vl16)}, 4, {vr(vL)}")
    a(f"v_readfirstlane_b32 s{sW}, {vr(vT0)}")
    a(f"v_lshlrev_b32 {vr(vl8)}, 3, {vr(vL)}")
    a(f"v_mov_b32 {vr(vidx)}, 0xdddddddd")
    a(f"s_and_b32 s{sQG}, s{sW}, 1")
    a(f"s_lshr_b32 s{sKQ}, s{sW}, 1")
    a(f"s_lshr_b32 s{sRT}, s2, 3")
    a(f"s_lshl_b32 s{sRT}, s{sRT}, 1")
    a(f"s_add_u32 s{sRT}, s{sRT}, s{sQG}")
    a(f"s_and_b32 s{sHG}, s2, 7")
    a(f"v_mov_b32 {vr(vT0)}, {A_LDS_FLAG}")
    a(f"v_mov_b32 {vr(vT1)}, 0")
    a(f"ds_write_b32 {vr(vT0)}, {vr(vT1)}")
    a("s_waitcnt lgkmcnt(0)")
    srd(a, 16, 44, WS_BYTES)
    a(f"s_mul_i32 s{sT0}, s{sRT}, 40960")
    a(f"s_mul_i32 s{sT1}, s{sHG}, {4*1280}")
    a(f"s_add_u32 s{sT0}, s{sT0}, s{sT1}")
    if QF: a(f"s_add_u32 s{sT0}, s{sT0}, {QF}")
    for q in range(4):
        a(f"s_add_u32 s{sT1}, s{sKQ}, {q}")
        a(f"s_and_b32 s{sT1}, s{sT1}, 3")
        a(f"s_mul_i32 s{sT1}, s{sT1}, 1280")
        a(f"s_add_u32 s{sT1}, s{sT1}, s{sT0}")
        a(f"buffer_load_dwordx2 {vr(Q1[q],2)}, {vr(vl8)}, s[16:19], s{sT1} offen")
        a(f"buffer_load_dwordx2 {vr(Q1[q]+2,2)}, {vr(vl8)}, s[16:19], s{sT1} offen offset:512")
        a(f"buffer_load_dwordx2 {vr(Q2[q],2)}, {vr(vl8)}, s[16:19], s{sT1} offen offset:1024")
    a(f"s_lshl_b32 s{sU}, s{sW}, 8")
    a(f"s_add_u32 s{sU}, s{sU}, s2")
    a(f"s_cmp_ge_u32 s{sU}, 680")
    a("s_cbranch_scc1 k2_norepack")
    a(f"s_mul_i32 s{sT0}, s{sU}, 6554")
    a(f"s_lshr_b32 s{sT0}, s{sT0}, 16")
    a(f"s_mul_i32 s{sT1}, s{sT0}, 10")
    a(f"s_sub_u32 s{sT1}, s{sU}, s{sT1}")
    a(f"s_lshl_b32 s{sWFo}, s{sU}, 12")
    a(f"s_add_u32 s{sWFo}, s{sWFo}, {WF}")
    a(f"s_lshl_b32 s{sT2}, s{sT0}, 5")
    a("s_mov_b32 s46, 16\ns_mov_b32 s47, 4")
    a(f"s_cmp_lt_u32 s{sT0}, 48")
    a("s_cselect_b32 s4, s42, s40")
    a("s_cselect_b32 s5, s43, s41")
    a(f"s_mov_b32 s6, {640*1280}")
    a(f"s_cselect_b32 s6, {1536*1280}, s6")
    a("s_mov_b32 s7, 0x00020000")
    a("s_cbranch_scc1 k2_rp_go")
    a(f"s_sub_u32 s{sT2}, s{sT0}, 48")
    a(f"s_mul_i32 s{sT2}, s{sT2}, 40")
    a("s_mov_b32 s46, 20")
    a(f"s_cmp_lt_u32 s{sT0}, 64")
    a("s_cbranch_scc1 k2_rp_go")
    a(f"s_sub_u32 s{sT2}, s{sT0}, 64")
    a(f"s_mul_i32 s{sT2}, s{sT2}, 160")
    a(f"s_add_u32 s{sT2}, s{sT2}, 16")
    a("s_mov_b32 s46, 80\ns_mov_b32 s47, 20")
    a("k2_rp_go:")
    a("s_and_b32 s5, s5, 0xffff")
    a(f"v_lshrrev_b32 {vr(vT0)}, 5, {vr(vL)}")
    a(f"v_mul_lo_u32 {vr(vT0)}, {vr(vT0)}, s47")
    a(f"v_bfe_u32 {vr(vT1)}, {vr(vL)}, 3, 2")
    a(f"v_add_u32 {vr(vT0)}, {vr(vT0)}, {vr(vT1)}")
    a(f"v_mul_u32_u24 {vr(vT0)}, 1280, {vr(vT0)}")
    a(f"v_and_b32 {vr(vT1)}, 7, {vr(vL)}")
    a(f"v_lshl_add_u32 {vr(vT0)}, {vr(vT1)}, 4, {vr(vT0)}")
    a(f"s_lshl_b32 s{sT1}, s{sT1}, 7")
    a(f"s_lshl_b32 s{sT3}, s{sW}, 12")
    a(f"s_add_u32 s{sT3}, s{sT3}, {A_LDS_RP}")
    for p in range(4):
        a(f"s_mul_i32 s48, s46, {p>>1}")
        a(f"s_mul_i32 s49, s47, {2*(p&1)}")
        a(f"s_add_u32 s48, s48, s49")
        a(f"s_add_u32 s48, s48, s{sT2}")
        a(f"s_mul_i32 s48, s48, 1280")
        a(f"s_add_u32 m0, s{sT3}, {1024*p}")
        a(f"s_add_u32 s48, s48, s{sT1}")
        a(f"buffer_load_dwordx4 {vr(vT0)}, s[4:7], s48 offen lds")
    a(f"v_lshrrev_b32 {vr(vT0)}, 5, {vr(vL)}")
    a(f"v_lshlrev_b32 {vr(vT0)}, 4, {vr(vT0)}")
    a(f"v_bfe_u32 {vr(vT1)}, {vr(vL)}, 2, 3")
    a(f"v_add_u32 {vr(vT0)}, {vr(vT0)}, {vr(vT1)}")
    a(f"v_lshlrev_b32 {vr(vT0)}, 7, {vr(vT0)}")
    a(f"v_and_b32 {vr(vT1)}, 3, {vr(vL)}")
    a(f"v_lshl_add_u32 {vr(vT0)}, {vr(vT1)}, 3, {vr(vT0)}")
    a(f"v_add_u32 {vr(vT0)}, s{sT3}, {vr(vT0)}")
    a("s_waitcnt vmcnt(0)")
    for ct in range(4):
        for h in range(2):
            a(f"ds_read_b64_tr_b16 {vr(PK1[ct]+2*h,2)}, {vr(vT0)} offset:{1024*h+32*ct}")
    a("s_waitcnt lgkmcnt(0)")
    for ct in range(4):
        a(f"buffer_store_dwordx4 {vr(PK1[ct],4)}, {vr(vl16)}, s[16:19], s{sWFo} offen offset:{1024*ct}")
    a("s_waitcnt vmcnt(0)")
    a("k2_norepack:")
    a(f"s_mov_b32 s{sTry}, 0")
    a(f"s_mov_b32 s{sPre}, 1")
    a(f"s_mul_i32 s{sKo}, s{sKQ}, {16*1536}")
    a(f"s_add_u32 s{sKo}, s{sKo}, {KF}")
    a(f"s_mov_b32 s{sOff}, {f2u(64.0):#x}")
    a("k2_attempt:")
    a("s_waitcnt vmcnt(0)")
    a("s_mov_b64 exec, 0xffffffff00000000") if False else None
    a("s_mov_b32 exec_lo, 0")
    a(f"v_mov_b32 {vr(Q2[0])}, 0")
    a(f"v_mov_b32 {vr(Q2[0]+1)}, 0")
    a("s_mov_b32 exec_lo, -1")
    a(f"v_mov_b32 {vr(vmx)}, 0xff800000")
    a("k2_pre:")
    for t in range(4):
        if t == 2: a(f"s_add_u32 s{sT0}, s{sKo}, 3072")
        so = sKo if t < 2 else sT0
        a(f"buffer_load_dwordx4 {vr(PK1[t],4)}, {vr(vl16)}, s[16:19], s{so} offen offset:{1536*(t&1)}")
        a(f"buffer_load_dwordx2 {vr(PK2[t],2)}, {vr(vl8)}, s[16:19], s{so} offen offset:{1536*(t&1)+1024}")
    a(f"s_add_u32 s{sKo}, s{sKo}, {4*1536}")
    for t in range(4):
        a(f"s_waitcnt vmcnt({6-2*t})")
        a(f"v_mfma_f32_32x32x16_bf16 {vr(S[t],16)}, {vr(PK1[t],4)}, {vr(Q1[0],4)}, 0")
        a(f"v_mfma_f32_32x32x8_bf16 {vr(S[t],16)}, {vr(PK2[t],2)}, {vr(Q2[0],2)}, {vr(S[t],16)}")
    a("s_nop 7")
    for t in range(4):
        for i in range(8):
            a(f"v_max3_f32 {vr(vmx)}, {vr(S[t]+2*i)}, {vr(S[t]+2*i+1)}, {vr(vmx)}")
    a(f"s_sub_u32 s{sPre}, s{sPre}, 1")
    a(f"s_cmp_lg_u32 s{sPre}, 0")
    a("s_cbranch_scc1 k2_pre")
    a(f"s_mul_i32 s{sKo}, s{sKQ}, {16*1536}")
    a(f"s_add_u32 s{sKo}, s{sKo}, {KF}")
    a(f"s_lshl_b32 s{sVo}, s{sKQ}, 15")
    a(f"s_add_u32 s{sVo}, s{sVo}, {VF}")
    def loadK(b):
        return [f"buffer_load_dwordx4 {vr(K1[b],4)}, {vr(vl16)}, s[16:19], s{sKo} offen",
                f"buffer_load_dwordx2 {vr(K2[b],2)}, {vr(vl8)}, s[16:19], s{sKo} offen offset:1024",
                f"s_add_u32 s{sKo}, s{sKo}, 1536"]
    def loadV(b):
        return [f"buffer_load_dwordx4 {vr(VV[b][0],4)}, {vr(vl16)}, s[16:19], s{sVo} offen",
                f"buffer_load_dwordx4 {vr(VV[b][1],4)}, {vr(vl16)}, s[16:19], s{sVo} offen offset:1024",
                f"s_add_u32 s{sVo}, s{sVo}, 2048"]
    for x in loadK(0) + loadV(0) + loadK(1): a(x)
    a(f"v_mov_b32 {vr(vT0)}, {vr(vmx)}")
    a("s_nop 1")
    a(f"v_permlane32_swap_b32 {vr(vmx)}, {vr(vT0)}")
    a("s_nop 1")
    a(f"v_max_f32 {vr(vmx)}, {vr(vmx)}, {vr(vT0)}")
    a(f"v_add_f32 {vr(vmx)}, s{sOff}, {vr(vmx)}")
    a(f"v_xor_b32 {vr(vmx)}, 0x80000000, {vr(vmx)}")
    a(f"v_and_b32 {vr(vT0)}, 0xffff0000, {vr(vmx)}")
    a(f"v_sub_f32 {vr(vT1)}, {vr(vmx)}, {vr(vT0)}")
    a(f"v_and_b32 {vr(vT2)}, 0xffff0000, {vr(vT1)}")
    a(f"v_sub_f32 {vr(vT1)}, {vr(vT1)}, {vr(vT2)}")
    P = PK2[0]
    a(f"v_lshrrev_b32 {vr(vT0)}, 16, {vr(vT0)}")
    a(f"v_or_b32 {vr(P)}, {vr(vT0)}, {vr(vT2)}")
    a(f"v_lshrrev_b32 {vr(P+1)}, 16, {vr(vT1)}")
    a(f"v_and_b32 {vr(vT0)}, 0xff, {vr(vl8)}")
    a(f"s_lshl_b32 s{sT0}, s{sQG}, 10")
    a(f"s_lshl_b32 s{sT1}, s{sKQ}, 8")
    a(f"s_add_u32 s{sT1}, s{sT1}, s{sT0}")
    a(f"v_add_u32 {vr(vT1)}, s{sT1}, {vr(vT0)}")
    a(f"ds_write_b64 {vr(vT1)}, {vr(P,2)} offset:{A_LDS_M}")
    for q in range(4):
        for i in range(16): a(f"v_mov_b32 {vr(O[q]+i)}, 0")
    a("s_waitcnt lgkmcnt(0)")
    a("s_barrier")
    a("s_mov_b32 exec_lo, 0")
    for q in range(4):
        a(f"s_add_u32 s{sT1}, s{sKQ}, {q}")
        a(f"s_and_b32 s{sT1}, s{sT1}, 3")
        a(f"s_lshl_b32 s{sT1}, s{sT1}, 8")
        a(f"s_add_u32 s{sT1}, s{sT1}, s{sT0}")
        a(f"v_add_u32 {vr(vT1)}, s{sT1}, {vr(vT0)}")
        a(f"ds_read_b64 {vr(Q2[q],2)}, {vr(vT1)} offset:{A_LDS_M}")
    a("s_mov_b32 exec_lo, -1")
    for i in range(8): a(f"v_mov_b32 {vr(S[3]+8+i)}, 0")
    for i in range(4): a(f"v_mov_b32 {vr(VV[1][1]+i)}, 0")
    a("s_waitcnt vmcnt(4) lgkmcnt(0)")
    def qk1(q, b): return f"v_mfma_f32_32x32x16_bf16 {vr(S[q],16)}, {vr(K1[b],4)}, {vr(Q1[q],4)}, 0"
    def qk2(q, b): return f"v_mfma_f32_32x32x8_bf16 {vr(S[q],16)}, {vr(K2[b],2)}, {vr(Q2[q],2)}, {vr(S[q],16)}"
    def pv(q, b, f): return f"v_smfmac_f32_32x32x32_bf16 {vr(O[q],16)}, {vr(VV[b][f],4)}, {vr(S[q]+8*f,8)}, {vr(vidx)}"
    a(qk1(0, 0)); a(qk2(0, 0))
    a(f"s_mov_b32 s{sCnt}, 0")
    a("s_nop 7")
    a("s_nop 3")
    a(".p2align 6")
    a("k2_loop:")
    for b in range(2):
        for q in range(4):
            nq = (q + 1) & 3; nb = b if q < 3 else 1 - b
            pq = (q - 1) & 3; pb = b if q > 0 else 1 - b
            def ex(i0):
                for i in range(i0, i0 + 4): a(f"v_exp_f32 {vr(S[q]+i)}, {vr(S[q]+i)}")
            if q == 3: a("s_waitcnt vmcnt(2)")
            a(qk1(nq, nb)); ex(0)
            a(qk2(nq, nb))
            if q == 3:
                for x in loadK(b): a(x)
            ex(4)
            a(pv(pq, pb, 1))
            if q == 0:
                a("s_waitcnt vmcnt(2)")
                for x in loadV(1 - b): a(x)
            ex(8)
            a(pv(q, b, 0)); ex(12)
    a(f"s_add_u32 s{sCnt}, s{sCnt}, 1")
    a(f"s_cmp_lt_u32 s{sCnt}, 8")
    a("s_cbranch_scc1 k2_loop")
    a("s_nop 1")
    a(pv(3, 1, 1))
    a("s_nop 7")
    a("s_nop 3")
    for q in range(1, 4):
        a(f"s_add_u32 s{sT1}, s{sKQ}, {q}")
        a(f"s_and_b32 s{sT1}, s{sT1}, 3")
        a(f"s_lshl_b32 s{sT0}, s{sQG}, 2")
        a(f"s_add_u32 s{sT1}, s{sT1}, s{sT0}")
        a(f"s_mul_i32 s{sT1}, s{sT1}, {3*3072}")
        a(f"s_add_u32 s{sT1}, s{sT1}, {A_LDS_O + (q-1)*3072}")
        a(f"v_add_u32 {vr(vT0)}, s{sT1}, {vr(vl16)}")
        for u in range(3):
            a(f"ds_write_b128 {vr(vT0)}, {vr(O[q]+4*u,4)} offset:{1024*u}")
    a(f"s_lshl_b32 s{sT0}, s{sQG}, 2")
    a(f"s_add_u32 s{sT1}, s{sKQ}, s{sT0}")
    a(f"s_mul_i32 s{sT1}, s{sT1}, {3*3072}")
    a(f"s_add_u32 s{sT1}, s{sT1}, {A_LDS_O}")
    a(f"v_add_u32 {vr(vT0)}, s{sT1}, {vr(vl16)}")
    a("s_waitcnt lgkmcnt(0)")
    a("s_barrier")
    for sidx in range(3):
        for u in range(3):
            a(f"ds_read_b128 {vr(S[sidx]+4*u,4)}, {vr(vT0)} offset:{3072*sidx+1024*u}")
    A = O[0]
    for sidx in range(3):
        a(f"s_waitcnt lgkmcnt({6-3*sidx})")
        for i in range(12): a(f"v_add_f32 {vr(A+i)}, {vr(A+i)}, {vr(S[sidx]+i)}")
    a(f"v_mov_b32 {vr(vT2)}, 0")
    for i in range(12): a(f"v_fma_f32 {vr(vT2)}, {vr(A+i)}, 0, {vr(vT2)}")
    a(f"v_mov_b32 {vr(vT0)}, {vr(A+8)}")
    a(f"v_mov_b32 {vr(vT1)}, {vr(A+8)}")
    a("s_nop 1")
    a(f"v_permlane32_swap_b32 {vr(vT0)}, {vr(vT1)}")
    a("s_nop 1")
    a(f"v_rcp_f32 {vr(vT0)}, {vr(vT1)}")
    a(f"v_cmp_u_f32 vcc, {vr(vT2)}, {vr(vT2)}")
    a(f"v_cmp_ngt_f32 s[46:47], {vr(vT1)}, 0")
    for i in range(12): a(f"v_mul_f32 {vr(A+i)}, {vr(vT0)}, {vr(A+i)}")
    for i in range(6): a(f"v_cvt_pk_bf16_f32 {vr(A+i)}, {vr(A+2*i)}, {vr(A+2*i+1)}")
    a("s_or_b64 vcc, vcc, s[46:47]")
    a(f"s_mul_i32 s{sT0}, s{sRT}, 136")
    a(f"s_lshl_b32 s{sT1}, s{sHG}, 2")
    a(f"s_add_u32 s{sT1}, s{sT1}, s{sKQ}")
    a(f"s_add_u32 s{sT1}, s{sT1}, s{sT0}")
    a(f"s_lshl_b32 s{sT1}, s{sT1}, 10")
    a(f"s_add_u32 s{sT1}, s{sT1}, {AF + 96*1024}")
    a(f"buffer_store_dwordx4 {vr(A,4)}, {vr(vl16)}, s[16:19], s{sT1} offen")
    a(f"s_add_u32 s{sT0}, s{sT0}, s{sHG}")
    a(f"s_lshl_b32 s{sT0}, s{sT0}, 10")
    a(f"s_and_b32 s{sT1}, s{sKQ}, 1")
    a(f"s_lshl_b32 s{sT1}, s{sT1}, 9")
    a(f"s_add_u32 s{sT0}, s{sT0}, s{sT1}")
    a(f"s_lshr_b32 s{sT1}, s{sKQ}, 1")
    a(f"s_lshl_b32 s{sT1}, s{sT1}, 3")
    a(f"s_add_u32 s{sT0}, s{sT0}, s{sT1}")
    a(f"s_add_u32 s{sT0}, s{sT0}, {AF + 128*1024}")
    a("s_mov_b32 exec_hi, 0")
    a(f"buffer_store_dwordx2 {vr(A+4,2)}, {vr(vl16)}, s[16:19], s{sT0} offen")
    a("s_mov_b32 exec_hi, -1")
    a(f"s_cmp_lg_u32 s{sTry}, 0")
    a("s_cbranch_scc1 k2_end")
    a(f"v_mov_b32 {vr(vT0)}, {A_LDS_FLAG}")
    a("s_cbranch_vccz k2_noflag")
    a(f"v_mov_b32 {vr(vT1)}, 1")
    a(f"ds_write_b32 {vr(vT0)}, {vr(vT1)}")
    a("k2_noflag:")
    a("s_waitcnt lgkmcnt(0)")
    a("s_barrier")
    a(f"ds_read_b32 {vr(vT1)}, {vr(vT0)}")
    a("s_waitcnt lgkmcnt(0)")
    a(f"v_readfirstlane_b32 s{sT0}, {vr(vT1)}")
    a("s_nop 3")
    a(f"s_cmp_eq_u32 s{sT0}, 0")
    a("s_cbranch_scc1 k2_end")
    a(f"s_mov_b32 s{sTry}, 1")
    a(f"s_mov_b32 s{sPre}, 16")
    a(f"s_mov_b32 s{sKo}, {KF}")
    a(f"s_mov_b32 s{sOff}, 0")
    a("s_branch k2_attempt")
    a("k2_end:")
    a("s_endpgm")
    return V.hi

K3_LDS = 8 * 20 * 1024
def gen_k3(a):
    K = "k3_kernel"
    a(f".globl {K}\n.p2align 8\n.type {K},@function\n{K}:")
    a("s_cmp_ge_u32 s2, 256\ns_cbranch_scc1 k3_end")
    a("s_load_dwordx2 s[40:41], s[0:1], 0")
    a("s_load_dwordx2 s[42:43], s[0:1], 72")
    a("s_load_dwordx2 s[44:45], s[0:1], 88")
    sW, sRB, sCB, sT0, sT1, sAo, sAo2, sWo, sWo2 = range(20, 29)
    V = Alloc(1, 256)
    vL = V(); vT0 = V(); vT1 = V(); vT2 = V(); vl16 = V(); va = V(); vo = V()
    NB = 4
    Af = [[V(4) for _ in range(4)] for _ in range(NB)]
    Wf = [[V(4) for _ in range(5)] for _ in range(NB)]
    acc = [[V(4) for _ in range(4)] for _ in range(5)]
    xr = [V(4), V(4)]
    a(f"v_and_b32 {vr(vL)}, 63, v0")
    a(f"v_lshrrev_b32 {vr(vT0)}, 6, v0")
    a(f"v_lshlrev_b32 {vr(vl16)}, 4, {vr(vL)}")
    a(f"v_readfirstlane_b32 s{sW}, {vr(vT0)}")
    a(f"s_and_b32 s{sT0}, s2, 7")
    a(f"s_lshr_b32 s{sT1}, s2, 3")
    a(f"s_lshr_b32 s{sRB}, s{sT0}, 1")
    a(f"s_lshl_b32 s{sRB}, s{sRB}, 3")
    a(f"s_and_b32 s{sCB}, s{sT1}, 7")
    a(f"s_add_u32 s{sRB}, s{sRB}, s{sCB}")
    a(f"s_and_b32 s{sCB}, s{sT0}, 1")
    a(f"s_lshl_b32 s{sCB}, s{sCB}, 2")
    a(f"s_lshr_b32 s{sT1}, s{sT1}, 3")
    a(f"s_add_u32 s{sCB}, s{sCB}, s{sT1}")
    a(f"v_lshrrev_b32 {vr(vT0)}, 4, {vr(vL)}")
    a(f"v_lshlrev_b32 {vr(vT0)}, 9, {vr(vT0)}")
    a(f"v_and_b32 {vr(vT1)}, 15, {vr(vL)}")
    a(f"v_lshl_add_u32 {vr(va)}, {vr(vT1)}, 4, {vr(vT0)}")
    a(f"s_mul_i32 s{sAo}, s{sRB}, {272*1024}")
    a(f"s_lshl_b32 s{sT0}, s{sW}, 11")
    a(f"s_add_u32 s{sAo}, s{sAo}, s{sT0}")
    a(f"s_add_u32 s{sAo}, s{sAo}, {AF}")
    a(f"s_mul_i32 s{sWo}, s{sW}, {40*1024}")
    a(f"s_mul_i32 s{sT0}, s{sCB}, {5*1024}")
    a(f"s_add_u32 s{sWo}, s{sWo}, s{sT0}")
    a(f"s_add_u32 s{sWo}, s{sWo}, {WF}")
    a("s_waitcnt lgkmcnt(0)")
    srd(a, 16, 44, WS_BYTES)
    srd(a, 4, 40, 2048 * 1280)
    srd(a, 8, 42, 2048 * 1280)
    def loads(b, last=False):
        r = []
        if last:
            r.append(f"s_cmp_ge_u32 s{sW}, 4\ns_cselect_b32 s{sAo}, {OOB}, s{sAo}\ns_cselect_b32 s{sWo}, {OOB}, s{sWo}")
        r.append(f"s_add_u32 s{sAo2}, s{sAo}, {136*1024}\ns_add_u32 s{sWo2}, s{sWo}, 4096")
        for rho in range(4):
            r.append(f"buffer_load_dwordx4 {vr(Af[b][rho],4)}, {vr(va)}, s[16:19], s{sAo if rho < 2 else sAo2} offen offset:{256*(rho&1)}")
        for ct in range(5):
            r.append(f"buffer_load_dwordx4 {vr(Wf[b][ct],4)}, {vr(vl16)}, s[16:19], s{sWo if ct < 4 else sWo2} offen offset:{1024*(ct&3)}")
        r.append(f"s_add_u32 s{sAo}, s{sAo}, {16*1024}\ns_add_u32 s{sWo}, s{sWo}, {8*40*1024}")
        return r
    for i in range(NB):
        for x in loads(i): a(x)
    a(f"v_mul_u32_u24 {vr(vT0)}, 6554, {vr(vL)}")
    a(f"v_lshrrev_b32 {vr(vT0)}, 16, {vr(vT0)}")
    a(f"v_mul_u32_u24 {vr(vT1)}, 10, {vr(vT0)}")
    a(f"v_sub_u32 {vr(vT1)}, {vr(vL)}, {vr(vT1)}")
    a(f"s_lshl_b32 s{sT0}, s{sW}, 3")
    a(f"v_add_u32 {vr(vT0)}, s{sT0}, {vr(vT0)}")
    a(f"s_lshl_b32 s{sT0}, s{sRB}, 6")
    a(f"v_add_u32 {vr(vT2)}, s{sT0}, {vr(vT0)}")
    a(f"v_mul_u32_u24 {vr(vo)}, 1280, {vr(vT2)}")
    a(f"v_lshl_add_u32 {vr(vo)}, {vr(vT1)}, 4, {vr(vo)}")
    a(f"s_mul_i32 s{sT0}, s{sCB}, 160")
    a(f"v_add_u32 {vr(vo)}, s{sT0}, {vr(vo)}")
    a(f"v_mov_b32 {vr(vT2)}, {OOB}")
    a(f"v_cmp_gt_u32 vcc, 40, {vr(vL)}")
    a("s_nop 1")
    a(f"v_cndmask_b32 {vr(vo)}, {vr(vT2)}, {vr(vo)}, vcc")
    vrd = V()
    a(f"v_lshrrev_b32 {vr(vT2)}, 1, {vr(vT1)}")
    a(f"v_lshlrev_b32 {vr(vrd)}, 12, {vr(vT2)}")
    a(f"v_and_b32 {vr(vT1)}, 1, {vr(vT1)}")
    a(f"v_lshl_add_u32 {vr(vrd)}, {vr(vT1)}, 9, {vr(vrd)}")
    a(f"v_lshrrev_b32 {vr(vT2)}, 4, {vr(vT0)}")
    a(f"v_lshl_add_u32 {vr(vrd)}, {vr(vT2)}, 10, {vr(vrd)}")
    a(f"v_and_b32 {vr(vT2)}, 15, {vr(vT0)}")
    a(f"v_lshl_add_u32 {vr(vrd)}, {vr(vT2)}, 4, {vr(vrd)}")
    a(f"v_cndmask_b32 {vr(vrd)}, 0, {vr(vrd)}, vcc")
    for i in range(9):
        b = i % NB
        nxt = min(9 - 1 - i, NB - 1)
        if i == 8:
            a(f"s_cmp_ge_u32 s{sW}, 4")
            a("s_cbranch_scc1 k3_red")
        a(f"s_waitcnt vmcnt({9*nxt + (2 if i >= 6 else 0)})")
        for ct in range(5):
            for rho in range(4):
                c = vr(acc[ct][rho], 4) if i > 0 else "0"
                a(f"v_mfma_f32_16x16x32_bf16 {vr(acc[ct][rho],4)}, {vr(Wf[b][ct],4)}, {vr(Af[b][rho],4)}, {c}")
        if i + NB < 9:
            for x in loads(b, last=(i + NB == 8)): a(x)
        if i == 5:
            a(f"buffer_load_dwordx4 {vr(xr[0],4)}, {vr(vo)}, s[4:7], 0 offen")
            a(f"s_mov_b32 s{sT1}, {4*1280}")
            a(f"buffer_load_dwordx4 {vr(xr[1],4)}, {vr(vo)}, s[4:7], s{sT1} offen")
    a("k3_red:")
    a(f"s_mul_i32 s{sT0}, s{sW}, {20*1024}")
    a(f"v_add_u32 {vr(vT0)}, s{sT0}, {vr(vl16)}")
    a("s_nop 7")
    for ct in range(5):
        for rho in range(4):
            a(f"ds_write_b128 {vr(vT0)}, {vr(acc[ct][rho],4)} offset:{(ct*4+rho)*1024}")
    a("s_waitcnt vmcnt(0) lgkmcnt(0)")
    a("s_barrier")
    T = Af[0][0]
    vr2 = [vrd, vT0, vT1]
    a(f"v_add_u32 {vr(vT0)}, {3*20*1024}, {vr(vrd)}")
    a(f"v_add_u32 {vr(vT1)}, {6*20*1024}, {vr(vrd)}")
    for rnd in range(2):
        base = T + 64 * rnd
        for w in range(8):
            for hh in range(2):
                a(f"ds_read_b128 {vr(base+8*w+4*hh,4)}, {vr(vr2[w//3])} offset:{(w%3)*20*1024 + 256*hh + 64*rnd}")
            if rnd == 1 and False: pass
        if rnd == 0: continue
    for rnd in range(2):
        base = T + 64 * rnd
        a(f"s_waitcnt lgkmcnt({0 if rnd else 15})") if rnd else a("s_waitcnt lgkmcnt(0)")
        X = xr[rnd]
        for i in range(8):
            for w in range(1, 8):
                a(f"v_add_f32 {vr(base+i)}, {vr(base+i)}, {vr(base+8*w+i)}")
        for i in range(4):
            a(f"v_lshlrev_b32 {vr(base+8)}, 16, {vr(X+i)}")
            a(f"v_and_b32 {vr(base+9)}, 0xffff0000, {vr(X+i)}")
            a(f"v_add_f32 {vr(base+2*i)}, {vr(base+2*i)}, {vr(base+8)}")
            a(f"v_add_f32 {vr(base+2*i+1)}, {vr(base+2*i+1)}, {vr(base+9)}")
            a(f"v_cvt_pk_bf16_f32 {vr(X+i)}, {vr(base+2*i)}, {vr(base+2*i+1)}")
        a(f"buffer_store_dwordx4 {vr(X,4)}, {vr(vo)}, s[8:11], {'0' if rnd == 0 else 's%d' % sT1} offen")
    a("k3_end:")
    a("s_endpgm")
    return V.hi

def main(out):
    hdr = open(f"cdna_kernels/{NAME}.s.ref").read().split("; Override launch")[0]
    a = Asm()
    n1 = gen_k1(a); n2 = gen_k2(a); n3 = gen_k3(a)
    txt = hdr
    txt += f"; @launch kernel=k1_kernel grid=(256,1,1) block=(512,1,1) lds={K1_LDS}\n"
    txt += f"; @launch kernel=k2_kernel grid=(256,1,1) block=(512,1,1) lds={K2_LDS}\n"
    txt += f"; @launch kernel=k3_kernel grid=(256,1,1) block=(512,1,1) lds={K3_LDS}\n"
    txt += '.amdgcn_target "amdgcn-amd-amdhsa--gfx950"\n.text\n' + a.text()
    txt += '.section .rodata,"a"\n'
    for k, n in (("k1_kernel", n1), ("k2_kernel", n2), ("k3_kernel", n3)):
        txt += ".p2align 6\n" + kernel_desc(k, n, 64)
    open(out, "w").write(txt)
    print("vgprs", n1, n2, n3, "lines", len(a.lines))

if __name__ == "__main__":
    main(sys.argv[1] if len(sys.argv) > 1 else f"cdna_kernels/{NAME}.s")
```
